```python
import torch

def _softmax(x, axis=-1):
    return torch.softmax(x, dim=axis)
def _gelu(x):
    return torch.nn.functional.gelu(x, approximate="tanh")
def _silu(x):
    return torch.nn.functional.silu(x)
def _sigmoid(x):
    return torch.sigmoid(x)
def _layernorm(x, axis=-1, eps=1e-5):
    m = x.mean(dim=axis, keepdim=True)
    v = x.var(dim=axis, keepdim=True, unbiased=False)
    return (x - m) / torch.sqrt(v + eps)
def _scatter_add(tgt, idx, src, axis=0):
    return tgt.clone().index_add_(axis, idx, src)
def _segment_sum(src, seg, n):
    out = torch.zeros((n,) + src.shape[1:], dtype=src.dtype)
    return out.index_add_(0, seg, src)
def _pad(x, pw):
    flat = tuple(v for pair in reversed(pw) for v in pair)
    return torch.nn.functional.pad(x, flat)

kernel_name = 'sequential_preLN__ssm_conv_h3__mixer_s_mlp__prompt'

def setup_inputs():

    _w = (lambda a: (lambda t: t.to(torch.bfloat16) if t.is_floating_point() else t)(torch.as_tensor(a)))
    def _A_setup():
        B, S, D = 1, 2048, 640
        ks = 4
        return {
            "q": _w((lambda *s: torch.randn(*s, dtype=torch.bfloat16) * 0.05)(B, S, D)),
            "k": _w((lambda *s: torch.randn(*s, dtype=torch.bfloat16) * 0.4)(B, S, D)),
            "v": _w((lambda *s: torch.randn(*s, dtype=torch.bfloat16) * 0.4)(B, S, D)),
            "shift_k": _w((lambda *s: torch.randn(*s, dtype=torch.bfloat16) * 0.4)(D, ks) * 0.5),
            "ssm_k": _w((lambda *s: torch.randn(*s, dtype=torch.bfloat16) * 0.4)(D, S) * (1.0 / S ** 0.5)),
            "ssm_D": _w((lambda *s: torch.randn(*s, dtype=torch.bfloat16) * 0.4)(D)),
        }
    _A_in = _A_setup()

    def _B_setup():
        B, S, D, F = 1, 2048, 640, 1728
        return {
            "x":  _w((lambda *s: torch.randn(*s, dtype=torch.bfloat16) * 0.05)(B, S, D)),
            "w1": _w((lambda *s: torch.randn(*s, dtype=torch.bfloat16) * 3.2)(D, D) * (D ** -0.5)),
            "w2": _w((lambda *s: torch.randn(*s, dtype=torch.bfloat16) * 3.2)(D, D) * (D ** -0.5)),
            "w3": _w((lambda *s: torch.randn(*s, dtype=torch.bfloat16) * 3.2)(D, F) * (D ** -0.5)),
            "w4": _w((lambda *s: torch.randn(*s, dtype=torch.bfloat16) * 3.2)(F, D) * (F ** -0.5)),
        }
    _B_in = _B_setup()

    return {
        "A_q": _A_in["q"],
        "A_k": _A_in["k"],
        "A_v": _A_in["v"],
        "A_shift_k": _A_in["shift_k"],
        "A_ssm_k": _A_in["ssm_k"],
        "A_ssm_D": _A_in["ssm_D"],
        "B_x": _B_in["x"],
        "B_w1": _B_in["w1"],
        "B_w2": _B_in["w2"],
        "B_w3": _B_in["w3"],
        "B_w4": _B_in["w4"],
    }

def reference(A_q, A_k, A_v, A_shift_k, A_ssm_k, A_ssm_D, B_x, B_w1, B_w2, B_w3, B_w4):
    def _A_ref(q, k, v, shift_k, ssm_k, ssm_D):
        B, S, D = q.shape
        ks = shift_k.shape[-1]
        k_pad = _pad(k, ((0, 0), (ks - 1, 0), (0, 0)))
        k_shift = torch.zeros_like(k)
        for t in range(ks):
            k_shift = k_shift + k_pad[:, t:t + S, :] * shift_k[:, ks - 1 - t][None, None, :]
        kv = k_shift * v
        L = 2 * S
        kv_pad = _pad(kv, ((0, 0), (0, S), (0, 0)))
        kf_pad = _pad(ssm_k, ((0, 0), (0, S)))
        kv_f = (lambda x, axes=(-2,-1): torch.fft.rfft2(x.float(), dim=axes))(kv_pad[:, None, :, :], axes=(1, 2))
        kf_f = (lambda x, axes=(-2,-1): torch.fft.rfft2(x.float(), dim=axes))(kf_pad[:, None, :], axes=(1, 2))
        kf_f = (lambda x, *d: x.permute(*d))(kf_f, 1, 2, 0)
        y_f = kv_f * kf_f[None, :, :, :]
        y = (lambda x, s, axes=(-2,-1): torch.fft.irfft2(x, s=s, dim=axes).to(torch.bfloat16))(y_f, (1, L), axes=(1, 2))[:, 0, :S, :]
        y = y + kv * ssm_D[None, None, :]
        return q * y

    def _B_ref(x, w1, w2, w3, w4):
        B, S, D = x.shape
        h = _gelu(_layernorm(x, axis=-1) @ w1)
        c = D // 4
        g0 = _pad(h[:, :, 0*c:1*c], ((0, 0), (1, 0), (0, 0)))[:, :S, :]
        g1 = _pad(h[:, :, 1*c:2*c], ((0, 0), (0, 1), (0, 0)))[:, 1:, :]
        g2 = _pad(h[:, :, 2*c:3*c], ((0, 0), (2, 0), (0, 0)))[:, :S, :]
        g3 = _pad(h[:, :, 3*c:   ], ((0, 0), (0, 2), (0, 0)))[:, 2:, :]
        hs = torch.concatenate([g0, g1, g2, g3], axis=-1) @ w2
        x1 = x + hs
        h2 = _gelu(_layernorm(x1, axis=-1) @ w3) @ w4
        return x1 + h2

    x = A_q
    h = x + _A_ref(_layernorm(x, axis=-1), A_k, A_v, A_shift_k, A_ssm_k, A_ssm_D)
    h2 = h + _B_ref(_layernorm(h, axis=-1), B_w1, B_w2, B_w3, B_w4)
    return h2
```

```python
from mkco import *
offs = [0, 4096, 65536, 262144, 1<<20, 2<<20, 3<<20, 4<<20]
def kern(name, X, Y, dma):
    s = head(name) + """
    s_load_dwordx2 s[4:5], s[0:1], 0
    s_load_dwordx2 s[6:7], s[0:1], 8
    s_load_dwordx2 s[12:13], s[0:1], 16
    s_waitcnt lgkmcnt(0)
    s_mov_b32 s8, s4
    s_mov_b32 s9, s5
    s_mov_b32 s10, 0x10000000
    s_mov_b32 s11, 0x00020000
    s_mov_b32 s14, 0x100000
    s_mov_b32 s15, 0x00020000
    v_lshlrev_b32 v4, 4, v0
    v_mov_b32 v20, 0
    s_cmp_eq_u32 s2, 0
    s_cbranch_scc0 L_c_%s
""" % name
    for o in offs:
        if dma: s += "    s_mov_b32 m0, 0\n    s_mov_b32 s26, %d\n    buffer_load_dwordx4 v4, s[8:11], s26 offen %s lds\n" % (o, X)
        else: s += "    s_mov_b32 s26, %d\n    buffer_load_dwordx4 v[8:11], v4, s[8:11], s26 offen %s\n" % (o, X)
    s += """
    s_waitcnt vmcnt(0)
    v_mov_b32 v6, 1
    buffer_store_dword v6, v20, s[12:15], 0 offen sc1
    s_waitcnt vmcnt(0)
    s_endpgm
L_c_%s:
    s_cmp_eq_u32 s2, 8
    s_cbranch_scc1 L_go_%s
    s_cmp_eq_u32 s2, 1
    s_cbranch_scc1 L_go_%s
    s_endpgm
L_go_%s:
    s_mov_b32 s46, 0
L_p_%s:
    buffer_load_dword v8, v20, s[12:15], 0 offen sc1
    s_waitcnt vmcnt(0)
    v_cmp_ne_u32 vcc, 1, v8
    s_add_u32 s46, s46, 1
    s_cmp_gt_u32 s46, 100000
    s_cbranch_scc1 L_d_%s
    s_cbranch_vccnz L_p_%s
L_d_%s:
""" % ((name,) * 8)
    for i, o in enumerate(offs):
        s += """
    s_memtime s[20:21]
    s_waitcnt lgkmcnt(0)
    s_mov_b32 s26, %d
    buffer_load_dwordx4 v[8:11], v4, s[8:11], s26 offen %s
    s_waitcnt vmcnt(0)
    s_memtime s[22:23]
    s_waitcnt lgkmcnt(0)
    s_sub_u32 s22, s22, s20
    v_mov_b32 v%d, s22
""" % (o, Y, 24 + i)
    s += "    s_lshl_b32 s25, s2, 6\n    v_mov_b32 v6, s25\n"
    for i in range(8): s += "    global_store_dword v6, v%d, s[6:7] offset:%d\n" % (24 + i, 4 * i)
    s += "    s_waitcnt vmcnt(0)\n    s_endpgm\n" + kd(name, vgpr=64, accum=64, nptr=3)
    return s
cfg = [("pp", "", "", 0), ("ss", "sc1", "sc1", 0), ("ps", "", "sc1", 0), ("sp", "sc1", "", 0), ("dmas_s", "sc1", "sc1", 1), ("dmap_s", "", "sc1", 1), ("nt_s", "nt", "sc1", 0)]
src = "".join(kern(c[0] + "_kernel", *c[1:]) for c in cfg)
build(src, [(c[0] + "_kernel", 64, 102, 64) for c in cfg], 3, "t16")
open("t16_names.txt", "w").write("\n".join(c[0] + "_kernel" for c in cfg))
```

```python
from mkco import *
def kern(name, width):
    s = head(name) + """
    s_load_dwordx2 s[4:5], s[0:1], 0
    s_load_dwordx2 s[6:7], s[0:1], 8
    v_and_b32 v1, 63, v0
    v_lshrrev_b32 v9, 6, v0
    s_nop 1
    v_readfirstlane_b32 s3, v9
    s_nop 4
    s_and_b32 s3, s3, 3
    s_waitcnt lgkmcnt(0)
    s_mov_b32 s8, s4
    s_mov_b32 s9, s5
    s_mov_b32 s10, 0x4000000
    s_mov_b32 s11, 0x00020000
    s_and_b32 s16, s2, 7
    s_lshr_b32 s17, s2, 3
    s_cmp_ge_u32 s17, 20
    s_cbranch_scc1 L_e_%s
    s_mul_i32 s18, s16, 20
    s_add_u32 s18, s18, s17
    s_lshl_b32 s18, s18, 3            ; channel group byte offset
    s_mul_i32 s19, s3, %d
    s_add_u32 s18, s18, s19
    v_mul_u32_u24 v4, %d, v1
    v_add_u32 v4, s18, v4
    s_memtime s[20:21]
    s_waitcnt lgkmcnt(0)
""" % (name, 512 * 1280, 1280 * (8 if width == "blk" else 1))
    n = 0
    for ten in range(2):
        for i in range(8):
            off = ten * 2621440 + (i * 1280 if width == "blk" else i * 64 * 1280)
            s += "    s_mov_b32 s26, %d\n    buffer_load_dwordx2 v[%d:%d], v4, s[8:11], s26 offen\n" % (off, 16 + 2 * n, 17 + 2 * n); n += 1
    s += """
    s_waitcnt vmcnt(0)
    s_memtime s[22:23]
    s_waitcnt lgkmcnt(0)
    s_sub_u32 s22, s22, s20
    v_mov_b32 v5, s22
    s_lshl_b32 s25, s2, 2
    s_add_u32 s25, s25, s3
    s_lshl_b32 s25, s25, 2
    v_mov_b32 v6, s25
    global_store_dword v6, v5, s[6:7]
    s_waitcnt vmcnt(0)
L_e_%s:
    s_endpgm
""" % name + kd(name, vgpr=64, accum=64, nptr=2)
    return s
src = kern("lin_kernel", "lin") + kern("blk_kernel", "blk")
build(src, [("lin_kernel", 64, 102, 256), ("blk_kernel", 64, 102, 256)], 2, "t20")
```
